```python
import torch

def _softmax(x, axis=-1):
    return torch.softmax(x, dim=axis)
def _gelu(x):
    return torch.nn.functional.gelu(x, approximate="tanh")
def _silu(x):
    return torch.nn.functional.silu(x)
def _sigmoid(x):
    return torch.sigmoid(x)
def _layernorm(x, axis=-1, eps=1e-5):
    m = x.mean(dim=axis, keepdim=True)
    v = x.var(dim=axis, keepdim=True, unbiased=False)
    return (x - m) / torch.sqrt(v + eps)
def _scatter_add(tgt, idx, src, axis=0):
    return tgt.clone().index_add_(axis, idx, src)
def _segment_sum(src, seg, n):
    out = torch.zeros((n,) + src.shape[1:], dtype=src.dtype)
    return out.index_add_(0, seg, src)
def _pad(x, pw):
    flat = tuple(v for pair in reversed(pw) for v in pair)
    return torch.nn.functional.pad(x, flat)

kernel_name = 'concat_heads__gqa_block_cached__mha_block_cached__near_ridge'

def setup_inputs():

    _w = (lambda a: (lambda t: t.to(torch.bfloat16) if t.is_floating_point() else t)(torch.as_tensor(a)))
    def _A_setup():
        B, Sq, D = 32, 96, 576
        Hq, Hkv, Sk, Dh = 32, 16, 512, 128
        assert Hq % Hkv == 0, (Hq, Hkv)
        return {
            "x": _w((lambda *s: torch.randn(*s, dtype=torch.bfloat16) * 0.8)(B, Sq, D)),
            "k_cache": _w((lambda *s: torch.randn(*s, dtype=torch.bfloat16) * 0.8)(B, Hkv, Sk, Dh)),
            "v_cache": _w((lambda *s: torch.randn(*s, dtype=torch.bfloat16) * 0.05)(B, Hkv, Sk, Dh)),
            "wq": _w((lambda *s: torch.randn(*s, dtype=torch.bfloat16) * 0.8)(D, Hq * Dh) * (D ** -0.5)),
            "wo": _w((lambda *s: torch.randn(*s, dtype=torch.bfloat16) * 0.05)(Hq * Dh, D) * ((Hq * Dh) ** -0.5)),
        }
    _A_in = _A_setup()

    def _B_setup():
        B, Sq, D = 32, 96, 576
        H, Sk, Dh = 32, 512, 128
        return {
            "x": _w((lambda *s: torch.randn(*s, dtype=torch.bfloat16) * 0.8)(B, Sq, D)),
            "k_cache": _w((lambda *s: torch.randn(*s, dtype=torch.bfloat16) * 0.8)(B, H, Sk, Dh)),
            "v_cache": _w((lambda *s: torch.randn(*s, dtype=torch.bfloat16) * 0.05)(B, H, Sk, Dh)),
            "wq": _w((lambda *s: torch.randn(*s, dtype=torch.bfloat16) * 0.8)(D, H * Dh) * (D ** -0.5)),
            "wo": _w((lambda *s: torch.randn(*s, dtype=torch.bfloat16) * 0.05)(H * Dh, D) * ((H * Dh) ** -0.5)),
        }
    _B_in = _B_setup()

    return {
        "A_x": _A_in["x"],
        "A_k_cache": _A_in["k_cache"],
        "A_v_cache": _A_in["v_cache"],
        "A_wq": _A_in["wq"],
        "A_wo": _A_in["wo"],
        "B_x": _B_in["x"],
        "B_k_cache": _B_in["k_cache"],
        "B_v_cache": _B_in["v_cache"],
        "B_wq": _B_in["wq"],
        "B_wo": _B_in["wo"],
    }

def reference(A_x, A_k_cache, A_v_cache, A_wq, A_wo, B_x, B_k_cache, B_v_cache, B_wq, B_wo):
    def _A_ref(x, k_cache, v_cache, wq, wo):
        B, Sq, D = x.shape
        Hq, Dh = 32, 128
        Hkv = k_cache.shape[1]
        rep = Hq // Hkv
        q = (lambda x, *d: x.permute(*d))((x @ wq).reshape(B, Sq, Hq, Dh), 0, 2, 1, 3)
        k = (lambda x, n, axis: torch.repeat_interleave(x, n, dim=axis))(k_cache, rep, axis=1)
        v = (lambda x, n, axis: torch.repeat_interleave(x, n, dim=axis))(v_cache, rep, axis=1)
        scores = torch.einsum("bhqd,bhkd->bhqk", q, k) * (Dh ** -0.5)
        p = _softmax(scores, axis=-1)
        o = torch.einsum("bhqk,bhkd->bhqd", p, v)
        return (lambda x, *d: x.permute(*d))(o, 0, 2, 1, 3).reshape(B, Sq, Hq * Dh) @ wo

    def _B_ref(x, k_cache, v_cache, wq, wo):
        B, Sq, D = x.shape
        H, Dh = 32, 128
        q = (lambda x, *d: x.permute(*d))((x @ wq).reshape(B, Sq, H, Dh), 0, 2, 1, 3)
        scores = torch.einsum("bhqd,bhkd->bhqk", q, k_cache) * (Dh ** -0.5)
        p = _softmax(scores, axis=-1)
        o = torch.einsum("bhqk,bhkd->bhqd", p, v_cache)
        return (lambda x, *d: x.permute(*d))(o, 0, 2, 1, 3).reshape(B, Sq, H * Dh) @ wo

    a = _A_ref(A_x, A_k_cache, A_v_cache, A_wq, A_wo)
    b = _B_ref(B_x, B_k_cache, B_v_cache, B_wq, B_wo)
    return torch.concatenate([a, b], axis=-1)
```

```python
import re

REG = re.compile(r'^(v|s|a)(\d+)$')
RNG = re.compile(r'^(v|s|a)\[(\d+):(\d+)\]$')

def regs_of(tok):
    tok = tok.strip()
    m = REG.match(tok)
    if m: return [(m.group(1), int(m.group(2)))]
    m = RNG.match(tok)
    if m: return [(m.group(1), i) for i in range(int(m.group(2)), int(m.group(3)) + 1)]
    if tok == 'vcc': return [('s', 106), ('s', 107)]
    if tok == 'exec': return [('s', 126), ('s', 127)]
    if tok == 'm0': return [('s', 124)]
    return []

TRANS = ('v_exp_f32', 'v_rcp_f32', 'v_log_f32', 'v_rsq_f32', 'v_sqrt_f32')

class Ins:
    def __init__(self, text, tag=None):
        self.text = text
        self.tag = tag
        t = text.split(';')[0].strip()
        self.t = t
        self.op = t.split()[0] if t else ''
        self.label = t.endswith(':')
        rest = t[len(self.op):].strip()
        ops = [o.strip() for o in rest.split(',')] if rest else []
        if ops:
            last = ops[-1].split()
            ops[-1] = last[0] if last else ''
            self.mods = last[1:]
        else:
            self.mods = []
        self.ops = ops
        op = self.op
        self.dst = []; self.src = []; self.srcC = []; self.srcAB = []
        self.kind = 'other'
        R = regs_of
        if self.label or not op or op.startswith('.'):
            self.kind = 'none'
        elif op.startswith('v_mfma'):
            self.kind = 'mfma'
            self.dst = R(ops[0]); self.srcAB = R(ops[1]) + R(ops[2]); self.srcC = R(ops[3])
            self.src = self.srcAB + self.srcC
        elif op.startswith('ds_read'):
            self.kind = 'ds'; self.dst = R(ops[0]); self.src = R(ops[1])
        elif op.startswith('ds_write'):
            self.kind = 'ds'; self.src = sum((R(o) for o in ops), [])
        elif op.startswith('buffer_load') and 'lds' in self.mods:
            self.kind = 'dma'; self.src = sum((R(o) for o in ops), []) + [('s', 124)]
        elif op.startswith('buffer_load'):
            self.kind = 'vmem'; self.dst = R(ops[0]); self.src = sum((R(o) for o in ops[1:]), [])
        elif op.startswith('buffer_store'):
            self.kind = 'vmem'; self.src = sum((R(o) for o in ops), [])
            self.wide = op.endswith('x4') or op.endswith('x3')
            self.data = R(ops[0])
        elif op.startswith('buffer_atomic'):
            self.kind = 'vmem'; self.src = sum((R(o) for o in ops), [])
            if 'sc0' in self.mods: self.dst = R(ops[0])
        elif op.startswith('buffer_wbl2') or op.startswith('buffer_inv'):
            self.kind = 'vmem'
        elif op.startswith('v_permlane'):
            self.kind = 'valu'; self.dst = R(ops[0]) + R(ops[1]); self.src = list(self.dst)
        elif op.startswith('v_cmp'):
            self.kind = 'valu'; self.dst = R(ops[0]); self.src = sum((R(o) for o in ops[1:]), [])
        elif op.startswith('v_'):
            self.kind = 'valu'; self.dst = R(ops[0]); self.src = sum((R(o.lstrip('-')) for o in ops[1:]), [])
            if op.startswith('v_cndmask') and len(ops) == 3: self.src += R('vcc')
        elif op.startswith('s_load') or op.startswith('s_memtime') or op.startswith('s_memrealtime'):
            self.kind = 'smem'; self.dst = R(ops[0]); self.src = sum((R(o) for o in ops[1:]), [])
        elif op in ('s_waitcnt',):
            self.kind = 'wait'
        elif op == 's_barrier':
            self.kind = 'barrier'
        elif op == 's_nop':
            self.kind = 'nop'
        elif op.startswith('s_cmp') or op.startswith('s_cbranch') or op in ('s_branch', 's_endpgm', 's_setprio', 's_sleep'):
            self.kind = 'salu'; self.src = sum((R(o) for o in ops), [])
        elif op.startswith('s_'):
            self.kind = 'salu'; self.dst = R(ops[0]); self.src = sum((R(o) for o in ops[1:]), [])
        else:
            raise ValueError('unknown op ' + text)
        self.trans = op.replace('_e32', '') in TRANS
    def states(self):
        if self.kind == 'none': return 0
        if self.kind == 'nop': return int(self.ops[0]) + 1
        return 1
    def cost(self):
        if self.kind == 'none': return 0
        if self.kind == 'mfma': return 2
        if self.trans: return 2
        return 1
    def waits(self):
        d = {}
        for m in re.finditer(r'(vmcnt|lgkmcnt)\((\d+)\)', self.t): d[m.group(1)] = int(m.group(2))
        return d

def check_trace(trace, name=''):
    errs = []
    pos = 0
    lastw = {}
    lastCread = {}
    lastwide = {}
    lgkm = []
    pend = {}
    vm = []
    vpend = {}
    def need(ins, reg, n, why):
        w = lastw.get(reg)
        if w is None: return
        d = pos - w[0]
        if d < n:
            errs.append(f'{name}: {why}: need {n} have {d}: [{w[2].t}] -> [{ins.t}] reg {reg}')
    for idx, ins in enumerate(trace):
        k = ins.kind
        if k == 'none': continue
        touched = set(ins.src) | set(ins.dst)
        for r in touched:
            if r in pend: errs.append(f'{name}: lgkm pending {r}: [{pend[r].t}] -> [{ins.t}]')
            if r in vpend and not (k == 'vmem' and r in ins.dst and r not in ins.src and ins.tag == 'junk'):
                errs.append(f'{name}: vm pending {r}: [{vpend[r].t}] -> [{ins.t}]')
        if k == 'wait':
            w = ins.waits()
            if 'lgkmcnt' in w:
                n = w['lgkmcnt']
                if any(x[0].kind == 'smem' for x in lgkm) and n != 0:
                    errs.append(f'{name}: counted lgkm wait with SMEM outstanding')
                while len(lgkm) > n:
                    o = lgkm.pop(0)
                    for r in o[1]:
                        if pend.get(r) is o[0]: del pend[r]
            if 'vmcnt' in w:
                n = w['vmcnt']
                while len(vm) > n:
                    o = vm.pop(0)
                    for r in o[1]:
                        if vpend.get(r) is o[0]: del vpend[r]
        if k == 'mfma':
            for r in ins.src:
                w = lastw.get(r)
                if w is None: continue
                if w[1] == 'valu': need(ins, r, 2, 'VALU->MFMA')
                elif w[1] == 'mfma':
                    if r in ins.srcAB: need(ins, r, 8, 'MFMA->MFMA AB')
                    elif w[2].dst != ins.srcC: need(ins, r, 6, 'MFMA->MFMA C partial')
        elif k in ('valu',):
            for r in ins.src + ins.dst:
                w = lastw.get(r)
                if w is None: continue
                if w[1] == 'mfma': need(ins, r, 8, 'MFMA->VALU')
            for r in ins.src:
                w = lastw.get(r)
                if w is None: continue
                if w[1] == 'valu':
                    if w[2].trans and not ins.trans: need(ins, r, 1, 'trans->VALU')
                    if ins.op.startswith('v_permlane') and r[0] == 'v': need(ins, r, 2, 'VALU->permlane')
                    if ins.op.startswith('v_readfirstlane') or ins.op.startswith('v_readlane'):
                        if r[0] == 'v': need(ins, r, 1, 'VALU->readlane')
                    if r[0] == 's': need(ins, r, 2, 'VALU sgpr->VALU')
            for r in ins.dst:
                if r in lastCread and pos - lastCread[r] < 3:
                    errs.append(f'{name}: MFMA C read -> VALU write WAR: [{ins.t}] reg {r}')
                if r in lastwide and pos - lastwide[r] < 2:
                    errs.append(f'{name}: wide store WAR: [{ins.t}] reg {r}')
        elif k in ('ds', 'dma', 'vmem'):
            for r in ins.src + ins.dst:
                w = lastw.get(r)
                if w is None: continue
                if w[1] == 'mfma': need(ins, r, 8, 'MFMA->mem')
                if w[1] == 'valu' and r[0] == 's' and k != 'ds': need(ins, r, 5, 'VALU sgpr->VMEM')
                if k == 'dma' and r == ('s', 124) and w[1] == 'salu': need(ins, r, 1, 'M0->DMA')
        elif k == 'salu':
            for r in ins.src:
                w = lastw.get(r)
                if w is not None and w[1] == 'valu': need(ins, r, 2, 'VALU sgpr->SALU (pad)')
        pos += ins.states()
        if k in ('ds', 'smem'):
            lgkm.append((ins, ins.dst))
            for r in ins.dst: pend[r] = ins
            if len([x for x in lgkm]) > 15 and k == 'ds':
                pass
        if k in ('dma', 'vmem'):
            vm.append((ins, ins.dst))
            for r in ins.dst: vpend[r] = ins
            if len(vm) > 63: errs.append(f'{name}: >63 vm outstanding at [{ins.t}]')
        for r in ins.dst:
            lastw[r] = (pos, k, ins)
        if k == 'mfma':
            for r in ins.srcC: lastCread[r] = pos
        if k == 'vmem' and getattr(ins, 'wide', False):
            for r in ins.data: lastwide[r] = pos
    return errs
```

```python
import sys, math, struct
from asmlib import Ins, check_trace

KNAME = "concat_heads__gqa_block_cached__mha_block_cached__near_ridge"

PIECE = 1056; BLK = 4224; SLOT = 16896
W_BASE = 640; NW = 7
R_BASE = W_BASE + NW * BLK
O_BASE = R_BASE + 5 * SLOT
LDS_BYTES = O_BASE + 49152
assert LDS_BYTES == 163840
STG_BASE = 640; STG_ROW = 1168
XSLOT = [R_BASE - W_BASE, R_BASE - W_BASE + SLOT, 0]
WQSLOT0 = 2 * SLOT

class Cfg:
    prio_a = 1
    prio_p = 0
    lag = 4
    touch = True
    stamp = False
    thr_log2 = 40
    def __init__(self, **kw):
        for k, v in kw.items(): setattr(self, k, v)

def f2u(x): return struct.unpack('<I', struct.pack('<f', x))[0]

class Em:
    def __init__(self, unroll):
        self.ins = []; self.unroll = unroll; self.nlabel = 0
        self.ds = []
        self.vm = []
        self.vmwaits = []
    def __call__(self, text, tag=None):
        for line in text.split('\n'):
            line = line.strip()
            if not line: continue
            i = Ins(line, tag); self.ins.append(i)
            if i.kind == 'ds': self.ds.append(tag)
            if i.kind in ('dma', 'vmem'): self.vm.append(tag)
            if i.kind == 'wait':
                w = i.waits()
                if 'lgkmcnt' in w:
                    n = w['lgkmcnt']; self.ds = self.ds[len(self.ds) - n:] if n else []
                if 'vmcnt' in w:
                    n = w['vmcnt']; self.vm = self.vm[max(0, len(self.vm) - n):] if n else []
    def wait_ds(self, tag):
        idx = [i for i, t in enumerate(self.ds) if t == tag]
        if not idx: return
        n = len(self.ds) - 1 - idx[-1]
        assert n <= 15
        self(f's_waitcnt lgkmcnt({n})')
    def vm_need(self, tags):
        idx = [i for i, t in enumerate(self.vm) if t in tags]
        if not idx: return None
        return len(self.vm) - 1 - idx[-1]
    def label(self, base):
        self.nlabel += 1
        return f'{base}_{self.nlabel}'
    def loop(self, name, count, cnt_reg, body):
        if self.unroll:
            ref = None
            for i in range(count):
                n0 = len(self.ins)
                body(i)
                import re as _re
                txt = [_re.sub(r'_\d+(:?)$', r'\1', x.t) for x in self.ins[n0:] if not (x.kind == 'wait' and 'vmcnt' in x.t)]
                if ref is None: ref = txt
                assert txt == ref, f'loop {name} not periodic at iter {i}: ' + str([(a, b) for a, b in zip(ref, txt) if a != b][:3])
                self(f's_sub_u32 {cnt_reg}, {cnt_reg}, 1\ns_cmp_lg_u32 {cnt_reg}, 0\ns_cbranch_scc1 {name}')
        else:
            self(f's_mov_b32 {cnt_reg}, {count}')
            self(f'{name}:')
            body(None)
            self(f's_sub_u32 {cnt_reg}, {cnt_reg}, 1\ns_cmp_lg_u32 {cnt_reg}, 0\ns_cbranch_scc1 {name}')

def vr(a, n=1): return f'v{a}' if n == 1 else f'v[{a}:{a+n-1}]'
def mfma(d, a, b, c): return f'v_mfma_f32_16x16x32_bf16 {vr(d,4)}, {vr(a,4)}, {vr(b,4)}, ' + (vr(c,4) if c is not None else '0')

ACC = 0; QR = 96; SR = 144; NM = 168; PB = [180, 192]; FP = 204; TP = 220; NT = 8; LR = 228
VA = 231; VT = 232; VB128H = 233; VTRH = 234; VXB = 235; VOW = 236; JUNK = 237; TA0 = 238; TA1 = 239; TA2 = 240; XT = 242
def acc(dt, j): return ACC + (dt * 3 + j) * 4
def qf(ks, j): return QR + (ks * 3 + j) * 4
def st(kt, j): return SR + (kt * 3 + j) * 4
def fp(i): return FP + (i & 3) * 4

S_ROUND = 's32'; S_CNT = 's33'; S_T0 = 's34'; S_T1 = 's35'; S_W = 's36'; S_U = 's37'
S_SC = 's[38:39]'
SA_SLOT = 's40'; SA_X = ['s41', 's42', 's43']; SA_FAIL = 's[44:45]'; SA_THR = 's46'

def spread(em, anchors, fixed, queue, pre_cost=0):
    n = len(anchors)
    q = [(Ins(x[0]), x[1], x[0], x[2] if len(x) > 2 else 10**9) for x in queue]
    total = sum(x[0].cost() for x in q) + sum(Ins(t).cost() for f in fixed for t, _ in f) + pre_cost
    cum = 0; qi = 0
    for i in range(n):
        for fn in anchors[i]: fn()
        for t, tag in fixed[i]:
            em(t, tag); cum += Ins(t).cost()
        target = total * (i + 1) / n
        must = max([k for k in range(qi, len(q)) if q[k][3] <= i + 1], default=-1)
        while qi < len(q) and q[qi][1] <= i and (cum + q[qi][0].cost() / 2 <= target or i == n - 1 or qi <= must):
            em(q[qi][2]); cum += q[qi][0].cost(); qi += 1
    assert qi == len(q), 'queue not flushed'

def softmax_ops(kt, par, lag):
    el = [(j, jj) for j in range(3) for jj in range(4)]
    ops = []
    def E(n): j, jj = el[n]; return f'v_exp_f32 v{TP + n % NT}, v{st(kt, j) + jj}'
    def A(n): j, jj = el[n]; return f'v_add_f32 v{LR + j}, v{LR + j}, v{TP + n % NT}'
    def C(n):
        j, jj = el[n]; return f'v_cvt_pk_bf16_f32 v{PB[par] + 4 * j + 2 * kt + (jj >> 1)}, v{TP + (n - 1) % NT}, v{TP + n % NT}'
    for n in range(12 + lag):
        if n < 12: ops.append(E(n))
        m = n - lag
        if m >= 0:
            ops.append(A(m))
            if m & 1: ops.append(C(m))
    return ops

def sm_second(par, lag):
    return [(t, 0, 18) if t.startswith('v_exp') else (t, 0) for t in softmax_ops(1, par, lag)]

def next_slot(reg, step, end, start):
    return [f's_add_u32 {reg}, {reg}, {step}', f's_cmp_eq_u32 {reg}, {end}', f's_cselect_b32 {reg}, {start}, {reg}']

def tr_reads(dst, addr, base, tag):
    return [(f'ds_read_b64_tr_b16 {vr(dst,2)}, {addr} offset:{base}', tag),
            (f'ds_read_b64_tr_b16 {vr(dst+2,2)}, {addr} offset:{base + 512}', tag)]

def mm_half(em, pending, frags, n_exec, early=(), mid=None, queue=(), post=(), first_tags=(), stamp=None):
    em('s_barrier')
    if stamp: stamp()
    for t, tag in frags[0]['reads']: em(t, tag)
    for t, tag in early: em(t, tag)
    for t, tag in frags[1]['reads']: em(t, tag)
    anchors = []; fixed = []
    def A(text): return lambda: em(text)
    def Wt(tag): return lambda: em.wait_ds(tag)
    nxt = 2
    if pending:
        pa = []; pf = []
        for pi in range(2):
            for j in range(3):
                pa.append([A(pending[pi][j])]); pf.append([])
            pf[-1] = list(frags[nxt]['reads']); nxt += 1
        anchors += pa; fixed += pf
    else:
        for _ in range(2):
            for t, tag in frags[nxt]['reads']: em(t, tag)
            nxt += 1
    split = len(anchors)
    for f in range(n_exec):
        for j in range(3):
            a = []
            if j == 0:
                if f == 0:
                    for tg in first_tags: a.append(Wt(tg))
                a.append(Wt(frags[f]['tag']))
            a.append(A(frags[f]['mf'][j]))
            anchors.append(a); fixed.append([])
        if nxt < 8:
            fixed[-1] = list(frags[nxt]['reads']); nxt += 1
            if nxt == 8: fixed[-1] += [(t, None) for t in post]
    if mid is not None:
        if split:
            spread(em, anchors[:split], fixed[:split], [])
        mid()
        spread(em, anchors[split:], fixed[split:], [(x[0], max(0, x[1] - split), (x[2] if len(x) > 2 else 10**9) - split) for x in queue])
    else:
        spread(em, anchors, fixed, list(queue))

def a_qhalf(em, par, first=False, pend_czero=False):
    frags = []
    for dt in range(8):
        frags.append(dict(reads=tr_reads(fp(dt), f'v{VT}', (dt >> 2) * BLK + (dt & 3) * 32, f'f{dt}'), tag=f'f{dt}',
                          mf=[mfma(acc(dt, j), fp(dt), PB[par] + 4 * j, None if first else acc(dt, j)) for j in range(3)]))
    early = [(f'ds_read_b128 {vr(PB[par] + 4*j, 4)}, v{VA} offset:{j * BLK + par * 64}', 'x') for j in range(3)]
    pending = None
    if not first:
        pending = [[mfma(acc(dt, j), fp(dt), PB[par ^ 1] + 4 * j, None if pend_czero else acc(dt, j)) for j in range(3)] for dt in (6, 7)]
    post = next_slot(SA_SLOT, SLOT, 5 * SLOT, WQSLOT0) + [f'v_add_u32 v{VT}, {SA_SLOT}, v{VTRH}']
    if par == 1:
        post += [f's_mov_b32 {S_T0}, {SA_X[0]}', f's_mov_b32 {SA_X[0]}, {SA_X[1]}', f's_mov_b32 {SA_X[1]}, {SA_X[2]}',
                 f's_mov_b32 {SA_X[2]}, {S_T0}', f'v_add_u32 v{VA}, {SA_X[0]}, v{VXB}']
    mm_half(em, pending, frags, 6, early=early, first_tags=('x',), post=post)
    em('s_waitcnt lgkmcnt(0)')

def k_frags(czero=False):
    fr = []
    for f in range(8):
        kt, ks = f >> 2, f & 3
        c = (lambda j: (None if czero else NM + 4 * j)) if ks == 0 else (lambda j: st(kt, j))
        fr.append(dict(reads=[(f'ds_read_b128 {vr(fp(f),4)}, v{VA} offset:{(ks >> 1) * BLK + (ks & 1) * 64 + kt * 512}', f'f{f}')], tag=f'f{f}',
                       mf=[mfma(st(kt, j), fp(f), qf(ks, j), c(j)) for j in range(3)]))
    return fr
def k_pending(): return [k_frags()[6]['mf'], k_frags()[7]['mf']]
def v_frags(par, czero=False):
    return [dict(reads=tr_reads(fp(dt), f'v{VT}', (dt >> 2) * BLK + (dt & 3) * 32, f'f{dt}'), tag=f'f{dt}',
                 mf=[mfma(acc(dt, j), fp(dt), PB[par] + 4 * j, None if czero else acc(dt, j)) for j in range(3)]) for dt in range(8)]
def v_pending(par): return [v_frags(par)[6]['mf'], v_frags(par)[7]['mf']]
def post_next_v(): return next_slot(SA_SLOT, SLOT, 5 * SLOT, 0) + [f'v_add_u32 v{VT}, {SA_SLOT}, v{VTRH}']
def post_next_k(): return next_slot(SA_SLOT, SLOT, 5 * SLOT, 0) + [f'v_add_u32 v{VA}, {SA_SLOT}, v{VB128H}']

def a_finalize_q(em):
    for ks in range(4):
        for j in range(3):
            for t in (acc(2 * ks, j), acc(2 * ks + 1, j)):
                em(f'v_pk_mul_f32 {vr(t,2)}, {vr(t,2)}, {S_SC}\nv_pk_mul_f32 {vr(t+2,2)}, {vr(t+2,2)}, {S_SC}')
        for j in range(3):
            t0, t1, q = acc(2 * ks, j), acc(2 * ks + 1, j), qf(ks, j)
            em(f'v_cvt_pk_bf16_f32 v{q}, v{t0}, v{t0+1}\nv_cvt_pk_bf16_f32 v{q+2}, v{t1}, v{t1+1}')
            em(f'v_cvt_pk_bf16_f32 v{q+1}, v{t0+2}, v{t0+3}\nv_cvt_pk_bf16_f32 v{q+3}, v{t1+2}, v{t1+3}')
        for sw in ('32', '16'):
            for j in range(3):
                q = qf(ks, j)
                em(f'v_permlane{sw}_swap_b32 v{q}, v{q+2}\nv_permlane{sw}_swap_b32 v{q+1}, v{q+3}')

def xreduce(em, regs, tmps, op):
    for sw in ('32', '16'):
        for r, t in zip(regs, tmps): em(f'v_mov_b32 v{t}, v{r}')
        em('s_nop 0')
        for r, t in zip(regs, tmps): em(f'v_permlane{sw}_swap_b32 v{r}, v{t}')
        for r, t in zip(regs, tmps): em(f'{op} v{r}, v{r}, v{t}')

def a_first_max(em):
    m = [XT, XT + 1, XT + 2]; t = [XT + 3, XT + 4, XT + 5]
    for j in range(3):
        a = st(0, j)
        em(f'v_max3_f32 v{m[j]}, v{a}, v{a+1}, v{a+2}')
    for j in range(3):
        a, b = st(0, j), st(1, j)
        em(f'v_max3_f32 v{m[j]}, v{m[j]}, v{a+3}, v{b}')
    for j in range(3):
        b = st(1, j)
        em(f'v_max3_f32 v{m[j]}, v{m[j]}, v{b+1}, v{b+2}')
    for j in range(3):
        b = st(1, j)
        em(f'v_max_f32 v{m[j]}, v{m[j]}, v{b+3}')
    xreduce(em, m, t, 'v_max_f32')
    for j in range(3):
        em(f'v_xor_b32 v{NM+4*j}, 0x80000000, v{m[j]}')
        em(f'v_mov_b32 v{LR+j}, 0')
    for j in range(3):
        for i in range(1, 4): em(f'v_mov_b32 v{NM+4*j+i}, v{NM+4*j}')
    for kt in range(2):
        for j in range(3):
            for i in range(4): em(f'v_add_f32 v{st(kt,j)+i}, v{st(kt,j)+i}, v{NM+4*j}')

def a_lfinal(em):
    l = [LR, LR + 1, LR + 2]; t = [XT + 3, XT + 4, XT + 5]
    xreduce(em, l, t, 'v_add_f32')
    for j in range(3):
        em(f'v_cmp_ngt_f32 vcc, {SA_THR}, v{LR+j}')
        em(f'v_rcp_f32 v{XT + 2*j}, v{LR+j}')
        em('s_nop 0')
        em(f's_or_b64 {SA_FAIL}, {SA_FAIL}, vcc')

def g_ops(kap):
    ops = []
    for half in range(2):
        for j in range(3):
            t = acc(2 * kap + half, j); r = XT + 2 * j
            ops.append(f'v_pk_mul_f32 {vr(t,2)}, {vr(t,2)}, {vr(r,2)} op_sel_hi:[1,0]')
            ops.append(f'v_pk_mul_f32 {vr(t+2,2)}, {vr(t+2,2)}, {vr(r,2)} op_sel_hi:[1,0]')
    for j in range(3):
        t0, t1 = acc(2 * kap, j), acc(2 * kap + 1, j)
        d = QR + (kap * 3 + j) * 4
        ops += [f'v_cvt_pk_bf16_f32 v{d}, v{t0}, v{t0+1}', f'v_cvt_pk_bf16_f32 v{d+1}, v{t0+2}, v{t0+3}',
                f'v_cvt_pk_bf16_f32 v{d+2}, v{t1}, v{t1+1}', f'v_cvt_pk_bf16_f32 v{d+3}, v{t1+2}, v{t1+3}',
                f'ds_write_b128 v{VOW}, {vr(d,4)} offset:{(kap * 6 + 2 * j) * 1024}']
    return ops

def stamp_fn(em, cfg, idx, role):
    if not cfg.stamp: return None
    def f():
        pass
    return f

def a_round(em, cfg, rnd):
    lag = cfg.lag
    a_qhalf(em, 0, first=True)
    a_qhalf(em, 1, pend_czero=True)
    def qbody(i):
        a_qhalf(em, 0); a_qhalf(em, 1)
    em.loop('LA_Q', 8, S_CNT, qbody)
    em(f's_mov_b32 {SA_SLOT}, 0\nv_mov_b32 v{VA}, v{VB128H}')
    pend = [[mfma(acc(dt, j), fp(dt), PB[1] + 4 * j, acc(dt, j)) for j in range(3)] for dt in (6, 7)]
    zq = [(f'v_mov_b32 v{acc(6,0) + i}, 0', 6) for i in range(24)]
    def mid18():
        a_finalize_q(em)
    mm_half(em, pend, k_frags(czero=True), 6, mid=mid18, queue=zq, post=post_next_k())
    em('s_waitcnt lgkmcnt(0)')
    def mid19():
        em('s_nop 3')
        a_first_max(em)
        for t in softmax_ops(0, 0, lag): em(t)
    mm_half(em, k_pending(), k_frags(), 6, mid=mid19, queue=sm_second(0, lag), post=post_next_v())
    em('s_waitcnt lgkmcnt(0)')
    mm_half(em, k_pending(), v_frags(0, czero=True), 6, queue=[(t, 0) for t in softmax_ops(0, 1, lag)], post=post_next_k())
    em('s_waitcnt lgkmcnt(0)')
    def abody(i):
        for par in (0, 1):
            mm_half(em, v_pending(par), k_frags(), 6, queue=sm_second(par ^ 1, lag), post=post_next_v())
            em('s_waitcnt lgkmcnt(0)')
            mm_half(em, k_pending(), v_frags(par ^ 1), 6, queue=[(t, 0) for t in softmax_ops(0, par, lag)], post=post_next_k() if par == 0 else post_next_v())
            em('s_waitcnt lgkmcnt(0)')
    def abody2(i):
        for par in (0, 1):
            mm_half(em, v_pending(par), k_frags(), 6, queue=sm_second(par ^ 1, lag), post=post_next_v())
            em('s_waitcnt lgkmcnt(0)')
            post = post_next_k()
            if par == 1: post = post + [f'v_add_u32 v{VT}, {SA_SLOT}, v{VTRH}']
            mm_half(em, k_pending(), v_frags(par ^ 1), 6, queue=[(t, 0) for t in softmax_ops(0, par, lag)], post=post)
            em('s_waitcnt lgkmcnt(0)')
    em.loop('LA_T', 7, S_CNT, abody2)
    def mid49():
        for t in softmax_ops(1, 1, lag): em(t)
        a_lfinal(em)
    gq = []
    for kap in range(3):
        gq += [(t, 6 + 6 * kap + 8) for t in g_ops(kap)]
    post = [f's_mov_b32 {SA_SLOT}, {WQSLOT0}', f'v_add_u32 v{VT}, {WQSLOT0}, v{VTRH}', f'v_add_u32 v{VA}, {SA_X[0]}, v{VXB}']
    mm_half(em, v_pending(0), v_frags(1), 8, mid=mid49, queue=gq, post=post)
    em('s_nop 7')
    for t in g_ops(3): em(t)
    em('s_waitcnt lgkmcnt(0)')

def lane_patterns(em, vl, t0, t1, t2, vb128, vtr):
    em(f'v_and_b32 v{t0}, 3, v{vl}\nv_mul_u32_u24 v{t0}, {PIECE}, v{t0}')
    em(f'v_bfe_u32 v{t1}, v{vl}, 2, 2\nv_lshrrev_b32 v{t2}, 4, v{vl}')
    if vb128 is not None:
        em(f'v_lshl_add_u32 v{vb128}, v{t1}, 7, v{t0}\nv_lshl_add_u32 v{vb128}, v{t2}, 4, v{vb128}')
    em(f'v_mul_u32_u24 v{vtr}, {PIECE}, v{t1}\nv_lshl_add_u32 v{vtr}, v{t2}, 7, v{vtr}')
    em(f'v_and_b32 v{t0}, 3, v{vl}\nv_lshl_add_u32 v{vtr}, v{t0}, 3, v{vtr}')

def a_code(em, cfg):
    em(f's_setprio {cfg.prio_a}')
    L = XT + 6
    em(f'v_and_b32 v{L}, 63, v0')
    lane_patterns(em, L, XT, XT + 1, XT + 2, VB128H, VTRH)
    em(f's_lshr_b32 {S_T0}, {S_W}, 1\ns_mul_i32 {S_T0}, {S_T0}, {2*BLK}\ns_add_u32 {S_T0}, {S_T0}, {R_BASE}')
    em(f's_and_b32 {S_T1}, {S_W}, 1\ns_lshl_b32 {S_T1}, {S_T1}, 9\ns_add_u32 {S_T1}, {S_T1}, {W_BASE}')
    em(f'v_add_u32 v{VXB}, {S_T1}, v{VB128H}')
    em(f'v_add_u32 v{VB128H}, {S_T0}, v{VB128H}\nv_add_u32 v{VTRH}, {S_T0}, v{VTRH}')
    em(f's_lshr_b32 {S_T0}, {S_W}, 1\ns_mul_i32 {S_T0}, {S_T0}, 24\ns_and_b32 {S_T1}, {S_W}, 1\ns_add_u32 {S_T0}, {S_T0}, {S_T1}')
    em(f's_lshl_b32 {S_T0}, {S_T0}, 10\ns_add_u32 {S_T0}, {S_T0}, {O_BASE}')
    em(f'v_lshlrev_b32 v{VOW}, 4, v{L}\nv_add_u32 v{VOW}, {S_T0}, v{VOW}')
    c = (128 ** -0.5) * math.log2(math.e)
    em(f's_mov_b32 s38, {f2u(c):#x}\ns_mov_b32 s39, {f2u(c):#x}')
    em(f's_mov_b32 {SA_THR}, {f2u(2.0 ** cfg.thr_log2):#x}\ns_mov_b64 {SA_FAIL}, 0')
    for i in range(3): em(f's_mov_b32 {SA_X[i]}, {XSLOT[i]}')
    em(f's_mov_b32 {SA_SLOT}, {WQSLOT0}\nv_add_u32 v{VT}, {WQSLOT0}, v{VTRH}\nv_add_u32 v{VA}, {XSLOT[0]}, v{VXB}')
    em(f's_mov_b32 {S_ROUND}, 0')
    if em.unroll:
        for r in range(2): a_round(em, cfg, r)
    else:
        em('LA_ROUND:')
        a_round(em, cfg, None)
        em(f's_add_u32 {S_ROUND}, {S_ROUND}, 1\ns_cmp_lt_u32 {S_ROUND}, 4\ns_cbranch_scc1 LA_ROUND')
    em('s_barrier')
    em('s_endpgm')

PACC = 0; OF = 216; WF = [240, 244]; VD0 = 248; VD1 = 249; VWRB = 250; VWR = 251; VOR = 252; VORB = 253
def pacc(blk, T): return PACC + (blk * 6 + T) * 4
SP_RD = 's40'; SP_K = 's41'; SP_V = 's42'; SP_X = 's43'; SP_RSX = 's44'; SP_UB = 's45'; SP_WQ = 's46'; SP_WO = 's47'
SP_WD = 's48'; SP_WR = 's49'; SP_UW = 's50'; SP_UX = 's51'
SRD_K = 's[8:11]'; SRD_V = 's[12:15]'; SRD_X = 's[16:19]'; SRD_WQ = 's[20:23]'; SRD_WO = 's[24:27]'; SRD_WS = 's[28:31]'

def cons_sched():
    c = {}
    n = 0
    for h, k in [(18, 3), (19, 2)] + [(21 + i, (2, 2, 3, 2)[i % 4]) for i in range(28)] + [(49, 4)]:
        for _ in range(k): c[n] = h; n += 1
    assert n == 72
    return c
CONS = cons_sched()
def wo_issue_sched():
    iss = {}
    for n in range(72):
        if n < 4: h = 15 if n < 2 else 16
        elif n < 7: h = 18
        else: h = CONS[n - 7] + 1
        if h == 20: h = 21
        assert h < CONS[n]
        iss.setdefault(h, []).append(n)
    return iss
WOISS = wo_issue_sched()

def dma_kv(em, isv, tag, cfg):
    srd, off = (SRD_V, SP_V) if isv else (SRD_K, SP_K)
    for blk in range(2):
        for p in range(4):
            imm = blk * 128 + p * 256
            em(f's_add_u32 m0, {SP_RD}, {blk * BLK + p * PIECE - imm}')
            if blk == 0 and p == 0:
                em(f's_nop 0')
            elif False: pass
            else: em('s_nop 0')
            em(f'buffer_load_dwordx4 v{VD0}, {srd}, {off} offen offset:{imm} nt lds', tag)
    em(f's_add_u32 {off}, {off}, 8192')
    em(f's_add_u32 {SP_RD}, {SP_RD}, {SLOT}\ns_add_u32 {S_T0}, {SP_UB}, {5*SLOT}\ns_cmp_eq_u32 {SP_RD}, {S_T0}\ns_cselect_b32 {SP_RD}, {SP_UB}, {SP_RD}')

def dma_x(em, c, tag):
    slot = W_BASE + XSLOT[c % 3]
    for blk in range(3):
        em(f's_add_u32 {S_T0}, {SP_X}, {blk * 36864}')
        for pp in range(2):
            em(f's_add_u32 m0, {SP_UX}, {slot + blk * BLK + pp * PIECE - pp * 1152}')
            em('s_nop 0')
            em(f'buffer_load_dwordx4 v{VD1}, {SRD_X}, {S_T0} offen offset:{pp * 1152} lds', tag)
    if c == 8: em(f's_mov_b32 {SP_X}, 0')
    else: em(f's_add_u32 {SP_X}, {SP_X}, 128')

def dma_wq(em, k, tag):
    slot = WQSLOT0 + (k % 3) * SLOT
    for p in range(4):
        em(f's_add_u32 {S_T0}, {SP_WQ}, {p * 8192}')
        for blk in range(2):
            em(f's_add_u32 m0, {SP_UB}, {slot + blk * BLK + p * PIECE - blk * 128}')
            em('s_nop 0')
            em(f'buffer_load_dwordx4 v{VD0}, {SRD_WQ}, {S_T0} offen offset:{blk * 128} lds', tag)
    if k == 17: em(f's_sub_u32 {SP_WQ}, {SP_WQ}, {17 * 262144 - 512}')
    else: em(f's_add_u32 {SP_WQ}, {SP_WQ}, 262144')

def dma_wo(em, n, tag):
    blk = n % 9
    for pp in range(2):
        em(f's_add_u32 m0, {SP_WD}, {pp * PIECE - pp * 1152}')
        em('s_nop 0')
        em(f'buffer_load_dwordx4 v{VD1}, {SRD_WO}, {SP_WO} offen offset:{pp * 1152} lds', tag)
    em(f's_add_u32 {SP_WO}, {SP_WO}, {128 if blk < 8 else 36864 - 1024}')
    em(f's_add_u32 {SP_WD}, {SP_WD}, {BLK}\ns_add_u32 {S_T0}, {SP_UW}, {NW * BLK}\ns_cmp_eq_u32 {SP_WD}, {S_T0}\ns_cselect_b32 {SP_WD}, {SP_UW}, {SP_WD}')

def item_of(n):
    if n == 0: return ('K', 0)
    if n == 31: return ('V', 15)
    return ('K', (n + 1) // 2) if n & 1 else ('V', n // 2 - 1)

def p_issue_list(role, h):
    L = []
    if role == 'S':
        if h == 0: L.append(('x', 1))
        if h % 2 == 0 and 2 <= h // 2 + 2 <= 8: L.append(('x', h // 2 + 2))
        kvh = {14: [0], 16: [1, 2], 17: [3]}
        if h in kvh: L += [('kv', n) for n in kvh[h]]
        if 18 <= h <= 45: L.append(('kv', h - 14))
        if h == 49: L.append(('x', 0))
    else:
        if 1 <= h <= 15: L.append(('wq', h + 2))
        if 46 <= h <= 48: L.append(('wq', h - 46))
        L += [('wo', n) for n in WOISS.get(h, [])]
    return L

def p_need_list(role, h):
    if role == 'S':
        if h < 18: return [('x', h // 2)] if h % 2 == 0 else []
        return [('kv', h - 18)]
    L = [('wq', h)] if h < 18 else []
    L += [('wo', n) for n in range(72) if CONS[n] == h]
    return L

def p_half(em, cfg, role, h, rtag, vmn=None):
    em('s_barrier')
    blocks = [n for n in range(72) if CONS[n] == h]
    skip1 = skip2 = None
    def wread(i):
        for t, tag in tr_reads(WF[i & 1], f'v{VWR}', 0, f'w{i}'): em(t, tag)
        for t in next_slot(SP_WR, BLK, NW * BLK, 0): em(t)
        em(f'v_add_u32 v{VWR}, {SP_WR}, v{VWRB}')
    if h == 0:
        em(f's_mov_b32 {SP_WR}, {3 * BLK}\nv_add_u32 v{VWR}, {3 * BLK}, v{VWRB}')
        em(f's_add_u32 {SP_WD}, {SP_UW}, {3 * BLK}')
        em(f'v_mov_b32 v{VOR}, v{VORB}')
        if role == 'W':
            em(f's_cmp_eq_u32 {S_ROUND}, 0\ns_cselect_b32 s26, 0, {1024 * 1152}')
            em(f's_sub_u32 {SP_WO}, {S_ROUND}, 1\ns_max_i32 {SP_WO}, {SP_WO}, 0\ns_mul_i32 {SP_WO}, {SP_WO}, {256 * 1152}')
    if h == 14 and role == 'S':
        em(f's_mov_b32 {SP_RD}, {SP_UB}')
    if blocks:
        skip1 = em.label('LP_s1' + role)
        em(f's_cmp_eq_u32 {S_ROUND}, 0\ns_cbranch_scc1 {skip1}')
        if h == 18:
            for T in range(6): em(f'ds_read_b128 {vr(OF + 4*T, 4)}, v{VOR} offset:{T * 1024}', 'o')
        wread(0)
        em(f'{skip1}:')
    for kind, n in p_issue_list(role, h):
        tag = (rtag + (1 if h >= 46 and kind in ('wq', 'x') else 0), kind, n)
        if kind == 'kv':
            dma_kv(em, item_of(n)[0] == 'V', tag, cfg)
            if n == 31: em(f's_add_u32 {SP_K}, {SP_K}, {SP_RSX}\ns_add_u32 {SP_V}, {SP_V}, {SP_RSX}')
        elif kind == 'x': dma_x(em, n, tag)
        elif kind == 'wq': dma_wq(em, n, tag)
        elif kind == 'wo': dma_wo(em, n, tag)
    if blocks:
        skip2 = em.label('LP_s2' + role)
        em(f's_cmp_eq_u32 {S_ROUND}, 0\ns_cbranch_scc1 {skip2}')
        for i, n in enumerate(blocks):
            blk = n % 9
            if i + 1 < len(blocks): wread(i + 1)
            em.wait_ds(f'w{i}')
            if i == 0 and h == 18: em.wait_ds('o')
            reload = (blk == 8 and n < 71)
            if reload: em(f'v_add_u32 v{VOR}, 6144, v{VOR}')
            for T in range(6):
                em(mfma(pacc(blk, T), WF[i & 1], OF + 4 * T, pacc(blk, T)))
                if reload: em(f'ds_read_b128 {vr(OF + 4*T, 4)}, v{VOR} offset:{T * 1024}', 'o')
        em(f'{skip2}:')
    hn = (h + 1) % 50
    need = [(rtag + (1 if hn == 0 else 0), k, n) for k, n in p_need_list(role, hn)]
    n = em.vm_need(need) if em.unroll else vmn
    if n is None: em('s_waitcnt lgkmcnt(0)')
    else: em(f's_waitcnt vmcnt({n}) lgkmcnt(0)')
    return n

def p_round(em, cfg, role, rtag, vmtab):
    def half(h, key=None):
        n = p_half(em, cfg, role, h, rtag, vmtab.get(key if key is not None else h))
        if em.unroll:
            k = key if key is not None else h
            if k in vmtab and rtag >= 1 or (k in vmtab and key is not None):
                if vmtab[k] != n:
                    a, b = vmtab[k], n
                    vmtab[k] = b if a is None else a if b is None else min(a, b)
            else: vmtab[k] = n
    for h in range(0, 21): half(h)
    def body(i):
        ii = 0 if i is None else i
        for q in range(4): half(21 + 4 * ii + q, key=('L', q))
    em.loop(f'LP_T{role}', 6, S_CNT, body)
    for h in range(45, 50): half(h)

def p_tail(em, cfg):
    GR = 9 * BLK
    em(f's_lshl_b32 {S_T0}, {S_U}, 1\ns_sub_i32 {S_T0}, {S_W}, {S_T0}\ns_mul_i32 {S_T0}, {S_T0}, 1152\nv_add_u32 v{VD1}, {S_T0}, v{VD1}')
    em(f's_mul_i32 {SP_UW}, {S_W}, {PIECE}\ns_add_u32 {SP_UW}, {SP_UW}, {W_BASE}')
    em(f's_mov_b32 s26, {1024 * 1152}\ns_mov_b32 {SP_WO}, {3 * 256 * 1152}')
    em(f's_mov_b32 {SP_WD}, {SP_UW}')
    em(f'v_mov_b32 v{VOR}, v{VORB}')
    def issue_group():
        for blk in range(9):
            em(f's_add_u32 m0, {SP_WD}, {blk * BLK}\ns_add_u32 {S_T0}, {SP_WO}, {blk * 128}')
            em(f'buffer_load_dwordx4 v{VD1}, {SRD_WO}, {S_T0} offen lds', 'tw')
        em(f's_add_u32 {SP_WO}, {SP_WO}, 36864\ns_min_u32 {SP_WO}, {SP_WO}, {31 * 36864}')
        em(f's_add_u32 {SP_WD}, {SP_WD}, {GR}\ns_add_u32 {S_T0}, {SP_UW}, {3 * GR}\ns_cmp_eq_u32 {SP_WD}, {S_T0}\ns_cselect_b32 {SP_WD}, {SP_UW}, {SP_WD}')
    issue_group(); issue_group()
    for T in range(6): em(f'ds_read_b128 {vr(OF + 4*T, 4)}, v{VOR} offset:{T * 1024}', 'o')
    em(f's_mov_b32 {SP_WR}, 0\nv_mov_b32 v{VWR}, v{VWRB}')
    def body(i):
        em('s_waitcnt vmcnt(9) lgkmcnt(0)')
        em('s_barrier')
        for t, tag in tr_reads(WF[0], f'v{VWR}', 0, 'w0'): em(t, tag)
        issue_group()
        em(f's_cmp_eq_u32 {S_CNT}, 1\ns_cselect_b32 {S_T0}, 0, 6144\nv_add_u32 v{VOR}, {S_T0}, v{VOR}')
        for blk in range(9):
            if blk < 8:
                for t, tag in tr_reads(WF[(blk + 1) & 1], f'v{VWR}', (blk + 1) * BLK, f'w{blk+1}'): em(t, tag)
            em.wait_ds(f'w{blk}')
            for T in range(6):
                em(mfma(pacc(blk, T), WF[blk & 1], OF + 4 * T, pacc(blk, T)))
                if blk == 8: em(f'ds_read_b128 {vr(OF + 4*T, 4)}, v{VOR} offset:{T * 1024}', 'o')
        for t in next_slot(SP_WR, GR, 3 * GR, 0): em(t)
        em(f'v_add_u32 v{VWR}, {SP_WR}, v{VWRB}')
    if em.unroll: em(f's_mov_b32 {S_CNT}, 8')
    em.loop('LP_TAIL', 8, S_CNT, body)
    em('s_waitcnt vmcnt(0) lgkmcnt(0)')
    em('s_barrier')
    L = OF; A0 = OF + 1; A1 = OF + 2; T0 = OF + 3; TMP = OF + 4
    em(f'v_mbcnt_lo_u32_b32 v{L}, -1, 0\nv_mbcnt_hi_u32_b32 v{L}, -1, v{L}')
    em(f'v_and_b32 v{T0}, 15, v{L}\nv_mul_u32_u24 v{A0}, {STG_ROW}, v{T0}\nv_lshrrev_b32 v{T0}, 4, v{L}\nv_lshl_add_u32 v{A0}, v{T0}, 3, v{A0}')
    em(f's_lshl_b32 {S_T0}, {S_W}, 5\ns_add_u32 {S_T0}, {S_T0}, {STG_BASE}\nv_add_u32 v{A0}, {S_T0}, v{A0}\nv_add_u32 v{A1}, {3 * 16 * STG_ROW}, v{A0}')
    k = 0
    for blk in range(9):
        for T in range(6):
            t = pacc(blk, T); d = TMP + 2 * (k % 8); k += 1
            em(f'v_cvt_pk_bf16_f32 v{d}, v{t}, v{t+1}\nv_cvt_pk_bf16_f32 v{d+1}, v{t+2}, v{t+3}')
            em(f'ds_write_b64 v{A0 if T < 3 else A1}, {vr(d,2)} offset:{(T % 3) * 16 * STG_ROW + blk * 128}', 'sw')
            if len(em.ds) > 6: em('s_waitcnt lgkmcnt(6)')
    em('s_waitcnt lgkmcnt(0)\ns_barrier')
    em(f'v_lshrrev_b32 v{T0}, 3, v{L}\nv_and_b32 v{L}, 7, v{L}\nv_lshlrev_b32 v{L}, 4, v{L}')
    em(f'v_mad_u32_u24 v{A0}, v{T0}, s62, v{L}\nv_mad_u32_u24 v{A1}, v{T0}, s63, v{L}')
    em(f's_mul_i32 {S_T0}, {S_W}, {24 * STG_ROW}\ns_add_u32 {S_T0}, {S_T0}, {STG_BASE}\nv_add_u32 v{A0}, {S_T0}, v{A0}')
    em(f's_mul_i32 {S_T1}, {S_W}, {24 * 1152}')
    for rg in range(3):
        for blk in range(9):
            d = (rg * 9 + blk) * 4
            em(f'ds_read_b128 {vr(d,4)}, v{A0} offset:{rg * 8 * STG_ROW + blk * 128}', f'c{rg}_{blk}')
            if len(em.ds) >= 12: em('s_waitcnt lgkmcnt(11)')
    for rg in range(3):
        em(f's_add_u32 {S_T0}, {S_T1}, {rg * 8 * 1152}')
        for blk in range(9):
            d = (rg * 9 + blk) * 4
            em.wait_ds(f'c{rg}_{blk}')
            em(f'buffer_store_dwordx4 {vr(d,4)}, v{A1}, {SRD_WS}, {S_T0} offen offset:{blk * 128}', 'st')
    em('s_waitcnt vmcnt(0)')
    em('s_endpgm')

def p_code(em, cfg, role, vmtab):
    em(f's_setprio {cfg.prio_p}')
    L = VWR; T0 = 254; T1 = 255
    em(f'v_and_b32 v{L}, 63, v0')
    lane_patterns(em, L, T0, T1, VOR, None, VWRB)
    em(f's_lshl_b32 {S_T0}, {S_W}, 5\ns_add_u32 {S_T0}, {S_T0}, {W_BASE}\nv_add_u32 v{VWRB}, {S_T0}, v{VWRB}')
    em(f'v_lshlrev_b32 v{VORB}, 4, v{L}\nv_add_u32 v{VORB}, {O_BASE}, v{VORB}')
    em(f'v_lshrrev_b32 v{T0}, 3, v{L}\nv_and_b32 v{T1}, 7, v{L}\nv_lshlrev_b32 v{T1}, 4, v{T1}')
    em(f's_mul_i32 {S_T0}, {S_U}, {2 * 1152}\nv_mul_u32_u24 v{VD1}, 4608, v{T0}\nv_add3_u32 v{VD1}, v{VD1}, v{T1}, {S_T0}')
    em(f's_mul_i32 {SP_UB}, {S_U}, {2 * BLK}\ns_add_u32 {SP_UB}, {SP_UB}, {R_BASE}')
    em(f's_mul_i32 {SP_UX}, {S_U}, {2 * PIECE}\ns_add_u32 {SP_UW}, {SP_UX}, {W_BASE}')
    em(f's_mov_b32 s62, {STG_ROW}\ns_mov_b32 s63, 1152')
    if role == 'S':
        em(f's_mul_i32 {SP_RSX}, s4, 131072')
        em(f's_mul_i32 {S_T0}, {S_U}, {SP_RSX}')
        em(f'v_lshlrev_b32 v{VD0}, 10, v{T0}\nv_add3_u32 v{VD0}, v{VD0}, v{T1}, {S_T0}')
        em(f's_mov_b32 {SP_K}, 0\ns_mov_b32 {SP_V}, 0\ns_mov_b32 {SP_X}, 0\ns_mov_b32 {SP_RD}, {SP_UB}')
        dma_x(em, 0, (0, 'x', 0))
    else:
        em(f'v_and_b32 v{VD0}, 3, v{T0}\nv_lshlrev_b32 v{VD0}, 1, v{VD0}\nv_lshrrev_b32 v{T0}, 2, v{T0}\nv_add_u32 v{VD0}, v{VD0}, v{T0}')
        em(f'v_lshlrev_b32 v{VD0}, 15, v{VD0}\ns_lshl_b32 {S_T0}, {S_U}, 8\nv_add3_u32 v{VD0}, v{VD0}, v{T1}, {S_T0}')
        em(f's_mov_b32 {SP_WQ}, 0\ns_mov_b32 {SP_WO}, 0\ns_mov_b32 {SP_WD}, {SP_UW}')
        for k in range(3): dma_wq(em, k, (0, 'wq', k))
    for i in range(215, -1, -1): em(f'v_mov_b32 v{i}, 0')
    need = [(0, k, n) for k, n in p_need_list(role, 0)]
    em(f's_waitcnt vmcnt({em.vm_need(need)})')
    em(f's_mov_b32 {S_ROUND}, 0')
    if em.unroll:
        for r in range(3): p_round(em, cfg, role, r, vmtab)
    else:
        em(f'LP_ROUND{role}:')
        p_round(em, cfg, role, 0, vmtab)
        em(f's_add_u32 {S_ROUND}, {S_ROUND}, 1\ns_cmp_lt_u32 {S_ROUND}, 4\ns_cbranch_scc1 LP_ROUND{role}')
    em('s_barrier')
    if role == 'S':
        if not em.unroll: em('s_branch LP_TAILSTART')
        else: p_tail(em, cfg)
    else:
        if not em.unroll: em('LP_TAILSTART:')
        p_tail(em, cfg)

def prologue(em):
    em('s_cmp_ge_u32 s2, 256\ns_cbranch_scc1 L_END')
    em('s_load_dwordx16 s[40:55], s[0:1], 0\ns_load_dwordx4 s[56:59], s[0:1], 64\ns_load_dwordx2 s[60:61], s[0:1], 96')
    em('v_lshrrev_b32 v1, 6, v0\ns_nop 0\nv_readfirstlane_b32 s3, v1')
    em(f's_and_b32 {S_T0}, s2, 7\ns_lshr_b32 {S_T1}, s2, 3')
    em(f's_and_b32 s6, {S_T0}, 3\ns_lshr_b32 {S_T0}, {S_T0}, 2\ns_and_b32 s4, {S_T1}, 1\ns_lshr_b32 s7, {S_T1}, 1')
    em(f's_lshl_b32 {S_T0}, {S_T0}, 4\ns_add_u32 s5, {S_T0}, s7')
    em(f's_and_b32 {S_W}, s3, 3\ns_and_b32 {S_U}, s3, 1')
    em('s_waitcnt lgkmcnt(0)')
    em('s_cmp_eq_u32 s4, 0')
    for a, b in ((40, 50), (42, 52), (44, 54), (46, 56), (48, 58)):
        em(f's_cselect_b64 s[{a}:{a+1}], s[{a}:{a+1}], s[{b}:{b+1}]')
    def srd(d, ptr, off, nrec):
        em(f's_add_u32 s{d}, s{ptr}, {off}\ns_addc_u32 s{d+1}, s{ptr+1}, 0\ns_and_b32 s{d+1}, s{d+1}, 0xffff')
        em(f's_mov_b32 s{d+2}, {nrec}\ns_mov_b32 s{d+3}, 0x20000')
    em(f's_lshl_b32 {S_T0}, s5, 2\ns_add_u32 {S_T0}, {S_T0}, s6\ns_add_u32 {S_T1}, s4, 19\ns_lshl_b32 {S_T0}, {S_T0}, {S_T1}\ns_lshl_b32 s62, 1, {S_T1}')
    srd(8, 42, S_T0, 's62'); srd(12, 44, S_T0, 's62')
    em(f's_mul_i32 {S_T0}, s5, 110592'); srd(16, 40, S_T0, 110592)
    em(f's_lshl_b32 {S_T0}, s6, 11\ns_sub_u32 s62, {576 * 8192}, {S_T0}'); srd(20, 46, S_T0, 's62')
    em(f's_mul_i32 {S_T0}, s6, {1024 * 1152}'); srd(24, 48, S_T0, 1024 * 1152)
    em(f's_lshl_b32 {S_T0}, s4, 5\ns_add_u32 {S_T0}, {S_T0}, s5\ns_lshl_b32 {S_T0}, {S_T0}, 2\ns_add_u32 {S_T0}, {S_T0}, s6\ns_mul_i32 {S_T0}, {S_T0}, 110592')
    srd(28, 60, S_T0, 110592)
    em('s_cmp_ge_u32 s3, 6\ns_cbranch_scc1 LP_W\ns_cmp_ge_u32 s3, 4\ns_cbranch_scc1 LP_S')

def reduce_kernel():
    em = Em(False)
    em('s_cmp_ge_u32 s2, 1728\ns_cbranch_scc1 LR_END')
    em('s_load_dwordx2 s[4:5], s[0:1], 80\ns_load_dwordx2 s[6:7], s[0:1], 96')
    em('v_lshrrev_b32 v1, 6, v0\nv_and_b32 v2, 63, v0\nv_readfirstlane_b32 s3, v1')
    em('s_lshl_b32 s8, s2, 2\ns_nop 1\ns_add_u32 s8, s8, s3')
    em(f's_mul_hi_u32 s9, s8, {(2**32 + 8) // 9:#x}\ns_mul_i32 s10, s9, 9\ns_sub_u32 s10, s8, s10')
    em(f's_mul_hi_u32 s11, s9, {(2**32 + 11) // 12:#x}\ns_mul_i32 s12, s11, 12\ns_sub_u32 s12, s9, s12')
    em('s_lshr_b32 s13, s11, 5\ns_and_b32 s14, s11, 31')
    em('v_lshrrev_b32 v3, 3, v2\nv_and_b32 v2, 7, v2\nv_lshlrev_b32 v2, 4, v2')
    em('v_mul_u32_u24 v4, 1152, v3\nv_add_u32 v4, v4, v2\nv_mul_u32_u24 v5, 2304, v3\nv_add_u32 v5, v5, v2')
    em(f's_mul_i32 s15, s11, {4 * 110592}\ns_mul_i32 s16, s12, {8 * 1152}\ns_add_u32 s15, s15, s16\ns_lshl_b32 s16, s10, 7\ns_add_u32 s15, s15, s16')
    em(f's_mul_i32 s17, s14, {96 * 2304}\ns_mul_i32 s18, s12, {8 * 2304}\ns_add_u32 s17, s17, s18\ns_mul_i32 s18, s13, 1152\ns_add_u32 s17, s17, s18\ns_add_u32 s17, s17, s16')
    em('s_waitcnt lgkmcnt(0)')
    em(f's_mov_b32 s20, s6\ns_and_b32 s21, s7, 0xffff\ns_mov_b32 s22, {256 * 110592}\ns_mov_b32 s23, 0x20000')
    em(f's_mov_b32 s24, s4\ns_and_b32 s25, s5, 0xffff\ns_mov_b32 s26, {3072 * 2304}\ns_mov_b32 s27, 0x20000')
    for g in range(4):
        em(f'buffer_load_dwordx4 v[{8+4*g}:{11+4*g}], v4, s[20:23], s15 offen')
        if g < 3: em('s_add_u32 s15, s15, 110592')
    for g in range(4):
        em(f's_waitcnt vmcnt({3 - g})')
        for i in range(4):
            if g == 0:
                em(f'v_lshlrev_b32 v{24+2*i}, 16, v{8+i}\nv_and_b32 v{25+2*i}, 0xffff0000, v{8+i}')
            else:
                r = 8 + 4 * g + i
                em(f'v_lshlrev_b32 v32, 16, v{r}\nv_and_b32 v33, 0xffff0000, v{r}\nv_add_f32 v{24+2*i}, v{24+2*i}, v32\nv_add_f32 v{25+2*i}, v{25+2*i}, v33')
    for i in range(4): em(f'v_cvt_pk_bf16_f32 v{8+i}, v{24+2*i}, v{25+2*i}')
    em('buffer_store_dwordx4 v[8:11], v5, s[24:27], s17 offen')
    em('LR_END:\ns_endpgm')
    errs = check_trace(em.ins, 'R')
    assert not errs, errs[:5]
    return em

HEADER = open('cdna_kernels/' + KNAME + '.s.ref').read().split('; Override launch')[0] if __import__('os').path.exists('cdna_kernels/' + KNAME + '.s.ref') else ''

def kd(name, nv, ns):
    return f'''.section .rodata,"a"
.p2align 6
.amdhsa_kernel {name}
  .amdhsa_next_free_vgpr {nv}
  .amdhsa_next_free_sgpr {ns}
  .amdhsa_accum_offset {nv}
  .amdhsa_group_segment_fixed_size 0
  .amdhsa_kernarg_size 104
  .amdhsa_user_sgpr_count 2
  .amdhsa_user_sgpr_kernarg_segment_ptr 1
  .amdhsa_system_sgpr_workgroup_id_x 1
  .amdhsa_float_denorm_mode_32 3
.end_amdhsa_kernel
.text
'''

def build(cfg):
    errs = []
    pro = Em(True); prologue(pro)
    ea = Em(True); a_code(ea, cfg)
    errs += check_trace(pro.ins + ea.ins, 'A')
    nbA = sum(i.kind == 'barrier' for i in ea.ins)
    tabs = {}
    for role in 'SW':
        tabs[role] = {}
        e = Em(True); p_code(e, cfg, role, tabs[role])
        e = Em(True); p_code(e, cfg, role, dict(tabs[role]))
        errs += check_trace(pro.ins + e.ins, 'P' + role)
        nb = sum(i.kind == 'barrier' for i in e.ins)
        assert nb == 3 * 50 + 1 + 8 + 2, nb
    assert nbA == 2 * 50 + 1, nbA
    if errs:
        for x in errs[:40]: print(x, file=sys.stderr)
        raise SystemExit(f'{len(errs)} hazards')
    main = Em(False); prologue(main)
    a_code(main, cfg)
    for role in 'SW':
        main(f'LP_{role}:'); main.ds = []; main.vm = []
        p_code(main, cfg, role, tabs[role])
    main('L_END:\ns_endpgm')
    red = reduce_kernel()
    out = [HEADER.rstrip('\n')]
    out.append(f'; @launch kernel={KNAME}_kernel grid=(256,1,1) block=(512,1,1) lds={LDS_BYTES}')
    out.append(f'; @launch kernel=reduce_kernel grid=(1728,1,1) block=(256,1,1) lds=0')
    out.append('.amdgcn_target "amdgcn-amd-amdhsa--gfx950"\n.text')
    for name, e, nv, ns in ((KNAME + '_kernel', main, 256, 102), ('reduce_kernel', red, 40, 32)):
        out.append(f'.globl {name}\n.p2align 8\n.type {name},@function\n{name}:')
        out += [(i.text if i.label else '    ' + i.text) for i in e.ins]
        out.append(kd(name, nv, ns))
    return '\n'.join(out), tabs

if __name__ == '__main__':
    kw = {}
    outp = 'k.s'
    for a in sys.argv[1:]:
        if '=' in a:
            k, v = a.split('='); kw[k] = int(v)
        else: outp = a
    txt, tabs = build(Cfg(**kw))
    open(outp, 'w').write(txt)
    print(tabs, file=sys.stderr)
```
